```python
import torch

def _softmax(x, axis=-1):
    return torch.softmax(x, dim=axis)
def _gelu(x):
    return torch.nn.functional.gelu(x, approximate="tanh")
def _silu(x):
    return torch.nn.functional.silu(x)
def _sigmoid(x):
    return torch.sigmoid(x)
def _layernorm(x, axis=-1, eps=1e-5):
    m = x.mean(dim=axis, keepdim=True)
    v = x.var(dim=axis, keepdim=True, unbiased=False)
    return (x - m) / torch.sqrt(v + eps)
def _scatter_add(tgt, idx, src, axis=0):
    return tgt.clone().index_add_(axis, idx, src)
def _segment_sum(src, seg, n):
    out = torch.zeros((n,) + src.shape[1:], dtype=src.dtype)
    return out.index_add_(0, seg, src)
def _pad(x, pw):
    flat = tuple(v for pair in reversed(pw) for v in pair)
    return torch.nn.functional.pad(x, flat)

kernel_name = 'standalone__adm_resblock__diffusion'

def setup_inputs():

    _w = (lambda a: (lambda t: t.to(torch.bfloat16) if t.is_floating_point() else t)(torch.as_tensor(a)))
    B, C, HW, E = 2, 128, 128, 768
    sc = (9.0 * C) ** -0.5
    return {
        "x": _w((lambda *s: torch.randn(*s, dtype=torch.bfloat16) * 0.05)(B, C, HW, HW)),
        "t_emb": _w((lambda *s: torch.randn(*s, dtype=torch.bfloat16) * 0.4)(B, E)),
        "g1": _w(1.0 + 0.1 * (lambda *s: torch.randn(*s, dtype=torch.bfloat16) * 0.4)(C)),
        "be1": _w(0.1 * (lambda *s: torch.randn(*s, dtype=torch.bfloat16) * 0.4)(C)),
        "w1": _w((lambda *s: torch.randn(*s, dtype=torch.bfloat16) * 0.4)(C, C, 3, 3) * sc),
        "w_emb": _w((lambda *s: torch.randn(*s, dtype=torch.bfloat16) * 0.4)(E, C) * (E ** -0.5)),
        "g2": _w(1.0 + 0.1 * (lambda *s: torch.randn(*s, dtype=torch.bfloat16) * 0.4)(C)),
        "be2": _w(0.1 * (lambda *s: torch.randn(*s, dtype=torch.bfloat16) * 0.4)(C)),
        "w2": _w((lambda *s: torch.randn(*s, dtype=torch.bfloat16) * 0.4)(C, C, 3, 3) * sc),
    }

def reference(x, t_emb, g1, be1, w1, w_emb, g2, be2, w2):
    B, C, H, W = x.shape
    G, eps = 4, 1e-5
    def gn(z, gamma, beta):
        zr = z.reshape(B, G, (C // G) * H * W)
        mu = zr.mean(-1).reshape(B, G, 1)
        var = ((zr - mu) ** 2).mean(-1).reshape(B, G, 1)
        zn = ((zr - mu) / torch.sqrt(var + eps)).reshape(B, C, H, W)
        return zn * gamma.reshape(1, C, 1, 1) + beta.reshape(1, C, 1, 1)
    def conv3(z, w):
        zp = _pad(z, ((0, 0), (0, 0), (1, 1), (1, 1)))
        taps = [torch.einsum("bchw,oc->bohw", zp[:, :, i:i+H, j:j+W], w[:, :, i, j]) for i in range(3) for j in range(3)]
        out = taps[0]
        for t in taps[1:]:
            out = out + t
        return out
    h = conv3(_silu(gn(x, g1, be1)), w1)
    emb = _silu(t_emb) @ w_emb
    h = h + emb.reshape(B, C, 1, 1)
    h = conv3(_silu(gn(h, g2, be2)), w2)
    return x + h
```

```python
import sys, argparse

ap = argparse.ArgumentParser()
ap.add_argument("-o", default="standalone__adm_resblock__diffusion.s")
ap.add_argument("--diag", type=int, default=0)
ap.add_argument("--ring", type=int, default=22)
ap.add_argument("--nb", type=int, default=8)
ap.add_argument("--dist", type=int, default=5)
args = ap.parse_args()
DIAG = args.diag

KN = "standalone__adm_resblock__diffusion_kernel"
L = []
def A(s): L.append("    " + s)
def label(s): L.append(s + ":")
def comment(s): L.append("    ; " + s)

PLANE = 3072
LB = 64
PITCH = 18
PTAB = LB + 24 * PLANE
EMBL = PTAB + 1024
LDS_BYTES = EMBL + 512
WS_EPOCH = 0
WS_ST1 = 0x1000
WS_ST2 = 0x8000
WS_EMBP = 0xC000
WS_WP = 0x100000
WS_HALO = 0x400000
WS_DBG = 0x1000000
WS_NREC = 0x1000000 + (0x100000 if DIAG else 0)
NLOG2E = 0xbfb8aa3b
SPIN_MAX = 400000

sWave, sB, sTy, sTx, sJ, sEpoch, sTag = 3, 4, 5, 6, 7, 8, 9
sT0, sT1, sT2, sT3 = 10, 11, 12, 13
sPc = 14
pX, pT, pG1, pBe1, pW1, pWe, pG2, pBe2 = 16, 18, 20, 22, 24, 26, 28, 30
pW2, pOut, pDbg, pWs = 32, 34, 36, 38
rX, rOut, rWs = 40, 44, 48
sCh = 52
sSelLo, sSelHi, sSelE, sSelO = 60, 61, 62, 63
sNL2E, sOnes, sBaseX, sSpin = 64, 65, 66, 67
sHal = 68
sHq = 72
sW = 76
sMean, sVar = 77, 78
sHi = 79
sTs = 80
def srd(r): return f"s[{r}:{r+3}]"
def sp(r): return f"s[{r}:{r+1}]"

vTid = 0
vLane, vL16, vFrag, vHw, vOutO, vHst, vHld, vHlds = 1, 2, 3, 4, 5, 6, 7, 8
vAct = 9
vG1, vB1, vG2, vB2 = 12, 13, 14, 15
vPt, vSt, vEmb = 16, 17, 18
vPr = 19
vS0, vS1 = 20, 21
vTmp = 22
ACC = 24
RING = 88
NRING = args.ring
BF = RING + 4 * NRING
NB = args.nb
PAR = BF + 4 * NB
RAW = PAR + 16
FT = RAW + 8
VEND = FT + 16
assert VEND <= 256, VEND
def vr(r, n): return f"v[{r}:{r+n-1}]"

tsn = [0]
def stamp():
    if DIAG:
        r = sTs + 2 * tsn[0]
        assert r + 1 <= 101
        A(f"s_memrealtime {sp(r)}")
        tsn[0] += 1

hdr = open("standalone__adm_resblock__diffusion.s.ref").read().split("\n")
for l in hdr:
    if l.startswith("; @launch"):
        L.append(f"; @launch grid=(256,1,1) block=(256,1,1) lds={LDS_BYTES}")
        break
    L.append(l)
L.append('.amdgcn_target "amdgcn-amd-amdhsa--gfx950"')
L.append(".text")
L.append(f".globl {KN}")
L.append(".p2align 8")
L.append(f".type {KN},@function")
label(KN)

A("s_cmp_ge_u32 s2, 256")
A("s_cbranch_scc1 L_end")
A("s_load_dwordx16 s[16:31], s[0:1], 0")
A("s_load_dwordx8 s[32:39], s[0:1], 64")
stamp()
A(f"v_lshrrev_b32 v{vTmp}, 6, v0")
A(f"v_and_b32 v{vLane}, 63, v0")
A(f"s_and_b32 s{sT0}, s2, 7")
A(f"v_readfirstlane_b32 s{sWave}, v{vTmp}")
A(f"s_lshr_b32 s{sB}, s{sT0}, 2")
A(f"s_and_b32 s{sT0}, s{sT0}, 3")
A(f"s_lshl_b32 s{sT0}, s{sT0}, 2")
A(f"s_lshr_b32 s{sT1}, s2, 6")
A(f"s_add_u32 s{sTy}, s{sT0}, s{sT1}")
A(f"s_lshr_b32 s{sTx}, s2, 3")
A(f"s_and_b32 s{sTx}, s{sTx}, 7")
A(f"s_lshl_b32 s{sJ}, s{sTy}, 3")
A(f"s_add_u32 s{sJ}, s{sJ}, s{sTx}")
A(f"s_lshl_b32 s{sBaseX}, s{sB}, 22")
A(f"s_lshl_b32 s{sT0}, s{sWave}, 20")
A(f"s_add_u32 s{sBaseX}, s{sBaseX}, s{sT0}")
A(f"s_lshl_b32 s{sT0}, s{sTy}, 11")
A(f"s_add_u32 s{sBaseX}, s{sBaseX}, s{sT0}")
A(f"s_lshl_b32 s{sT0}, s{sTx}, 5")
A(f"s_add_u32 s{sBaseX}, s{sBaseX}, s{sT0}")
for j in range(8):
    A(f"s_mov_b32 s{sCh+j}, {j*32768}")
XA = ACC
XB = ACC + 32
XC = ACC + 48
vOffA, vOffB, vOffC, vLdsA, vLdsB, vLdsC, vCgl, vRowA = [ACC + 56 + i for i in range(8)]
TR = RING
WS_IN = RING + 36
WS_OUT = RING
A(f"v_lshrrev_b32 v{vCgl}, 4, v{vLane}")
A(f"v_bfe_u32 v{vRowA}, v{vLane}, 1, 3")
A(f"v_and_b32 v{vTmp}, 1, v{vLane}")
A(f"v_lshlrev_b32 v{vOffA}, 18, v{vCgl}")
A(f"v_lshl_add_u32 v{vOffA}, v{vRowA}, 8, v{vOffA}")
A(f"v_lshl_add_u32 v{vOffA}, v{vTmp}, 4, v{vOffA}")
A(f"v_add_u32 v{vOffA}, s{sBaseX}, v{vOffA}")
A("s_waitcnt lgkmcnt(0)")
A(f"s_mov_b32 s{rX}, s{pX}")
A(f"s_mov_b32 s{rX+1}, s{pX+1}")
A(f"s_mov_b32 s{rX+2}, 0x800000")
A(f"s_mov_b32 s{rX+3}, 0x20000")
for j in range(8):
    A(f"buffer_load_dwordx4 {vr(XA+4*j,4)}, v{vOffA}, {srd(rX)}, s{sCh+j} offen")
A(f"s_lshl_b32 s{sT0}, s{sB}, 8")
A(f"s_load_dword s{sEpoch}, {sp(pWs)}, s{sT0}")
A(f"s_mov_b32 s{rWs}, s{pWs}")
A(f"s_mov_b32 s{rWs+1}, s{pWs+1}")
A(f"s_mov_b32 s{rWs+2}, {WS_NREC:#x}")
A(f"s_mov_b32 s{rWs+3}, 0x20000")
A(f"s_mov_b32 s{rOut}, s{pOut}")
A(f"s_mov_b32 s{rOut+1}, s{pOut+1}")
A(f"s_mov_b32 s{rOut+2}, 0x800000")
A(f"s_mov_b32 s{rOut+3}, 0x20000")
A(f"s_getpc_b64 {sp(sPc)}")
A(f"v_lshlrev_b32 v{vSt}, 7, v0")
A(f"v_min_u32 v{vSt}, CODE_PF_MAX, v{vSt}")
A(f"global_load_dword v{vEmb}, v{vSt}, {sp(sPc)}")
label("L_pf_base")
A(f"v_mul_u32_u24 v{vOffC}, 18, v{vTmp}")
A(f"v_add3_u32 v{vOffC}, v{vOffC}, v{vOffA}, -2")
A(f"v_mul_u32_u24 v{vTmp+1}, 7, v{vTmp}")
A(f"v_mov_b32 v{vSt}, 0x80000000")
A(f"v_cmp_eq_u32 vcc, s{sTx}, v{vTmp+1}")
A("s_nop 1")
A(f"v_cndmask_b32 v{vOffC}, v{vOffC}, v{vSt}, vcc")
vRs, vBk = FT, FT + 1
A(f"v_bfe_u32 v{vRs}, v{vLane}, 3, 1")
A(f"v_and_b32 v{vBk}, 7, v{vLane}")
A(f"v_mul_u32_u24 v{vOffB}, {9*256}, v{vRs}")
A(f"v_lshl_add_u32 v{vOffB}, v{vBk}, 3, v{vOffB}")
A(f"v_lshl_add_u32 v{vOffB}, v{vCgl}, 18, v{vOffB}")
A(f"s_sub_u32 s{sT0}, s{sBaseX}, {256+8}")
A(f"v_add_u32 v{vOffB}, s{sT0}, v{vOffB}")
A(f"v_mul_u32_u24 v{FT+2}, 15, v{vRs}")
A(f"v_cmp_eq_u32 vcc, s{sTy}, v{FT+2}")
A(f"v_cmp_lt_u32 {sp(sT2)}, 5, v{vBk}")
A(f"s_or_b64 vcc, vcc, {sp(sT2)}")
A(f"s_lshl_b32 s{sT0}, s{sTx}, 2")
A(f"s_sub_u32 s{sT0}, s{sT0}, 1")
A(f"v_add_u32 v{FT+2}, s{sT0}, v{vBk}")
A(f"v_cmp_lt_u32 {sp(sT2)}, 31, v{FT+2}")
A(f"s_or_b64 vcc, vcc, {sp(sT2)}")
A("s_nop 1")
A(f"v_cndmask_b32 v{vOffB}, v{vOffB}, v{vSt}, vcc")
for j in range(8):
    A(f"buffer_load_dwordx2 {vr(XB+2*j,2)}, v{vOffB}, {srd(rX)}, s{sCh+j} offen")
for j in range(8):
    A(f"buffer_load_ushort v{XC+j}, v{vOffC}, {srd(rX)}, s{sCh+j} offen")
A(f"v_and_b32 v{FT+2}, 31, v{vLane}")
A(f"s_lshl_b32 s{sT0}, s{sWave}, 5")
A(f"v_add_lshl_u32 v{FT+3}, v{FT+2}, s{sT0}, 1")
A(f"global_load_ushort v{vG1}, v{FT+3}, {sp(pG1)}")
A(f"global_load_ushort v{vB1}, v{FT+3}, {sp(pBe1)}")
A(f"global_load_ushort v{vG2}, v{FT+3}, {sp(pG2)}")
A(f"global_load_ushort v{vB2}, v{FT+3}, {sp(pBe2)}")
A(f"s_mov_b32 s{sSelLo}, 0x05040100")
A(f"s_mov_b32 s{sSelHi}, 0x07060302")
A(f"s_mov_b32 s{sSelE}, 0x07060100")
A(f"s_mov_b32 s{sSelO}, 0x05040302")
A(f"s_mov_b32 s{sNL2E}, {NLOG2E:#x}")
A(f"s_mov_b32 s{sOnes}, 0x3f803f80")
A(f"s_mov_b32 s{sHi}, 0xffff0000")
for p in range(2):
    for th in range(2):
        A(f"s_mov_b32 s{sHal+2*p+th}, {WS_HALO + p*2*0x40000 + th*4096:#x}")
for i in range(4):
    A(f"s_mov_b32 s{sHq+i}, {WS_HALO + i*0x40000:#x}")
A(f"s_mul_i32 s{sT1}, s{sWave}, {6*PLANE}")
A(f"s_add_u32 s{sT1}, s{sT1}, {LB}")
A(f"v_mul_u32_u24 v{FT+4}, {PLANE}, v{vCgl}")
A(f"v_add_u32 v{FT+4}, s{sT1}, v{FT+4}")
A(f"v_mul_u32_u24 v{FT+5}, {PITCH*16}, v{vRowA}")
A(f"v_add_u32 v{FT+5}, v{FT+5}, v{FT+4}")
A(f"v_lshl_add_u32 v{vLdsA}, v{vTmp}, 7, v{FT+5}")
A(f"v_add_u32 v{vLdsA}, {(PITCH+1)*16}, v{vLdsA}")
A(f"v_mul_u32_u24 v{vLdsC}, {17*16}, v{vTmp}")
A(f"v_add_u32 v{vLdsC}, v{vLdsC}, v{FT+5}")
A(f"v_add_u32 v{vLdsC}, {PITCH*16}, v{vLdsC}")
A(f"v_mul_u32_u24 v{vLdsB}, {9*PITCH*16}, v{vRs}")
A(f"v_lshl_add_u32 v{vLdsB}, v{vBk}, 6, v{vLdsB}")
A(f"v_add_u32 v{vLdsB}, v{vLdsB}, v{FT+4}")
A(f"v_subrev_u32 v{vLdsB}, 48, v{vLdsB}")
vHalf, vRsel, vCol, vSl = FT+6, FT+7, FT+8, FT+9
A(f"v_lshlrev_b32 v{vL16}, 4, v{vLane}")
A(f"v_lshrrev_b32 v{vHalf}, 5, v{vLane}")
A(f"v_bfe_u32 v{vRsel}, v{vLane}, 4, 1")
A(f"v_and_b32 v{vCol}, 15, v{vLane}")
A(f"v_lshlrev_b32 v{FT+10}, 3, v{vRsel}")
A(f"v_xor_b32 v{vCol}, v{vCol}, v{FT+10}")
A(f"v_mul_u32_u24 v{vSl}, {4*PITCH}, v{vRsel}")
A(f"v_add_lshl_u32 v{vSl}, v{vSl}, v{vCol}, 4")
A(f"v_mul_u32_u24 v{vFrag}, {6*PLANE}, v{vHalf}")
A(f"v_add3_u32 v{vFrag}, v{vFrag}, v{vSl}, {LB}")
A(f"v_mul_u32_u24 v{vHw}, {PLANE}, v{vHalf}")
A(f"v_add3_u32 v{vHw}, v{vHw}, v{vSl}, s{sT1}")
A(f"v_add_u32 v{vHw}, {(PITCH+1)*16}, v{vHw}")
A(f"v_lshlrev_b32 v{vOutO}, 15, v{FT+2}")
A(f"v_lshl_add_u32 v{vOutO}, v{vHalf}, 4, v{vOutO}")
A(f"v_add_u32 v{vOutO}, s{sBaseX}, v{vOutO}")
A(f"s_lshl_b32 s{sT0}, s{sB}, 22")
A(f"s_lshl_b32 s{sT2}, s{sWave}, 20")
A(f"s_add_u32 s{sT0}, s{sT0}, s{sT2}")
A(f"s_lshl_b32 s{sT2}, s{sTy}, 14")
A(f"s_add_u32 s{sT0}, s{sT0}, s{sT2}")
A(f"s_lshl_b32 s{sT2}, s{sTx}, 8")
A(f"s_add_u32 s{sT0}, s{sT0}, s{sT2}")
A(f"v_lshlrev_b32 v{vHst}, 18, v{vHalf}")
A(f"v_lshl_add_u32 v{vHst}, v{vRsel}, 13, v{vHst}")
A(f"v_lshl_add_u32 v{vHst}, v{vCol}, 4, v{vHst}")
A(f"v_add_u32 v{vHst}, s{sT0}, v{vHst}")
def halo_mask(t):
    m = 0
    for l in range(32):
        rsel, c16 = l >> 4, l & 15
        col = c16 ^ (8 * rsel)
        row = t + 4 * rsel
        if row in (0, 7) or col in (0, 15):
            m |= 1 << l
    return m
for i in range(4):
    A(f"v_mov_b32 v{PAR+i}, -1")
for t in range(4):
    A(f"s_mov_b32 exec_lo, {halo_mask(t):#x}")
    A(f"s_mov_b32 exec_hi, {halo_mask(t):#x}")
    for p in range(2):
        A(f"buffer_store_dwordx4 {vr(PAR,4)}, v{vHst}, {srd(rWs)}, s{sHal+2*p+(t>>1)} offen offset:{(t&1)*2048} sc1")
A(f"s_lshl_b32 s{sT2}, s{sB}, 2")
A(f"s_add_u32 s{sT2}, s{sT2}, s{sWave}")
A(f"s_lshl_b32 s{sT2}, s{sT2}, 7")
A(f"s_add_u32 s{sT3}, s{sT2}, s{sJ}")
A("s_mov_b32 exec_lo, 0")
A("s_mov_b32 exec_hi, 0x80000000")
A(f"v_mov_b32 v{FT+10}, s{sT3}")
A(f"v_lshlrev_b32 v{FT+10}, 3, v{FT+10}")
A(f"v_add_u32 v{FT+10}, {WS_ST2:#x}, v{FT+10}")
A(f"buffer_store_dwordx2 {vr(PAR,2)}, v{FT+10}, {srd(rWs)}, 0 offen sc1")
A("s_mov_b64 exec, -1")
vR, vC = FT+10, FT+11
A(f"v_mov_b32 v{vR}, 0")
A(f"v_mov_b32 v{vC}, v{vLane}")
A(f"v_cmp_lt_u32 vcc, 17, v{vLane}")
A(f"v_subrev_u32 v{FT+12}, 18, v{vLane}")
A("s_nop 0")
A(f"v_cndmask_b32 v{vR}, v{vR}, 9, vcc") if False else None
A(f"v_mov_b32 v{FT+13}, 9")
A(f"v_cndmask_b32 v{vR}, v{vR}, v{FT+13}, vcc")
A(f"v_cndmask_b32 v{vC}, v{vC}, v{FT+12}, vcc")
A(f"v_cmp_lt_u32 vcc, 35, v{vLane}")
A(f"v_subrev_u32 v{FT+12}, 35, v{vLane}")
A(f"v_mov_b32 v{FT+13}, 0")
A(f"v_cndmask_b32 v{vR}, v{vR}, v{FT+12}, vcc")
A(f"v_cndmask_b32 v{vC}, v{vC}, v{FT+13}, vcc")
A(f"v_cmp_lt_u32 vcc, 43, v{vLane}")
A(f"v_subrev_u32 v{FT+12}, 43, v{vLane}")
A(f"v_mov_b32 v{FT+13}, 17")
A(f"v_cndmask_b32 v{vR}, v{vR}, v{FT+12}, vcc")
A(f"v_cndmask_b32 v{vC}, v{vC}, v{FT+13}, vcc")
A(f"v_mul_u32_u24 v{vHlds}, {PITCH}, v{vR}")
A(f"v_add_u32 v{vHlds}, v{vHlds}, v{vC}")
A(f"v_cmp_lt_u32 {sp(sT2)}, 51, v{vLane}")
A(f"v_mov_b32 v{FT+13}, 184")
A("s_nop 0")
A(f"v_cndmask_b32 v{vHlds}, v{vHlds}, v{FT+13}, {sp(sT2)}")
A(f"v_lshlrev_b32 v{vHlds}, 4, v{vHlds}")
A(f"v_add_u32 v{vHlds}, s{sT1}, v{vHlds}")
A(f"v_lshlrev_b32 v{vHld}, 11, v{vR}")
A(f"v_lshl_add_u32 v{vHld}, v{vC}, 4, v{vHld}")
A(f"s_sub_u32 s{sT0}, s{sT0}, {2048+16}")
A(f"v_add_u32 v{vHld}, s{sT0}, v{vHld}")
A(f"s_lshl_b32 s{sT0}, s{sTy}, 3")
A(f"s_sub_u32 s{sT0}, s{sT0}, 1")
A(f"v_add_u32 v{FT+12}, s{sT0}, v{vR}")
A(f"v_cmp_lt_u32 vcc, 127, v{FT+12}")
A(f"s_or_b64 {sp(sT2)}, {sp(sT2)}, vcc")
A(f"s_lshl_b32 s{sT0}, s{sTx}, 4")
A(f"s_sub_u32 s{sT0}, s{sT0}, 1")
A(f"v_add_u32 v{FT+12}, s{sT0}, v{vC}")
A(f"v_cmp_lt_u32 vcc, 127, v{FT+12}")
A(f"s_or_b64 vcc, {sp(sT2)}, vcc")
A("s_nop 1")
A(f"v_cndmask_b32 v{vHld}, v{vHld}, v{vSt}, vcc")
for r in range(3):
    A(f"v_add_u32 v{FT+12}, {64*r}, v{vLane}")
    A(f"v_mul_u32_u24 v{vR}, 3641, v{FT+12}")
    A(f"v_lshrrev_b32 v{vR}, 16, v{vR}")
    A(f"v_mul_u32_u24 v{vC}, {PITCH}, v{vR}")
    A(f"v_sub_u32 v{vC}, v{FT+12}, v{vC}")
    A(f"s_lshl_b32 s{sT0}, s{sTy}, 3")
    A(f"s_sub_u32 s{sT0}, s{sT0}, 1")
    A(f"v_add_u32 v{vR}, s{sT0}, v{vR}")
    A(f"v_cmp_lt_u32 {sp(sT2)}, 64, v{vR}") if False else None
    A(f"v_cmp_lt_u32 vcc, 127, v{vR}")
    A(f"s_mov_b64 {sp(sT2)}, vcc")
    A(f"s_lshl_b32 s{sT0}, s{sTx}, 4")
    A(f"s_sub_u32 s{sT0}, s{sT0}, 1")
    A(f"v_add_u32 v{vC}, s{sT0}, v{vC}")
    A(f"v_cmp_lt_u32 vcc, 127, v{vC}")
    A(f"s_or_b64 vcc, {sp(sT2)}, vcc")
    A(f"v_mov_b32 v{FT+13}, 185")
    A("s_nop 0")
    A(f"v_cndmask_b32 v{FT+12}, v{FT+12}, v{FT+13}, vcc")
    A(f"v_lshlrev_b32 v{FT+12}, 4, v{FT+12}")
    A(f"v_add_u32 v{vAct+r}, s{sT1}, v{FT+12}")
A(f"s_lshl_b32 s{sT0}, s{sWave}, 8")
A(f"s_add_u32 s{sT0}, s{sT0}, {PTAB}")
A(f"v_bfe_u32 v{vPt}, v{vLane}, 3, 2")
A(f"v_lshlrev_b32 v{vPt}, 6, v{vPt}")
A(f"v_lshl_add_u32 v{vPt}, v{vBk}, 2, v{vPt}")
A(f"v_add_u32 v{vPt}, s{sT0}, v{vPt}")
A(f"v_mov_b32 v{vPr}, s{sT0}")

A(f"s_lshr_b32 s{sT0}, s{sJ}, 4")
A(f"s_and_b32 s{sT0}, s{sT0}, 3")
A(f"s_cmp_eq_u32 s{sT0}, s{sWave}")
A("s_cbranch_scc0 L_no_wshare")
A(f"s_cmp_ge_u32 s{sJ}, 64")
A(f"s_cselect_b32 s{sT2}, s{pW2}, s{pW1}")
A(f"s_cselect_b32 s{sT3}, s{pW2+1}, s{pW1+1}")
A(f"s_and_b32 s{sT0}, s{sJ}, 15")
A(f"s_mul_i32 s{sT1}, s{sT0}, 144")
A(f"s_mul_i32 s{sW}, s{sWave}, {32*2304}")
A(f"s_add_u32 s{sT1}, s{sT1}, s{sW}")
A(f"v_mul_u32_u24 v{FT+12}, 2304, v{FT+2}")
A(f"v_add_u32 v{FT+12}, s{sT1}, v{FT+12}")
A("s_mov_b32 exec_hi, 0")
for i in range(9):
    A(f"global_load_dwordx4 {vr(WS_IN+4*i,4)}, v{FT+12}, {sp(sT2)} offset:{16*i}")
A(f"s_lshl_b32 s{sT1}, s{sB}, 2")
A(f"s_add_u32 s{sT1}, s{sT1}, s{sWave}")
A(f"s_mul_i32 s{sT1}, s{sT1}, 144")
A(f"s_lshr_b32 s{sT2}, s{sJ}, 6")
A(f"s_mul_i32 s{sT2}, s{sT2}, 72")
A(f"s_add_u32 s{sT1}, s{sT1}, s{sT2}")
A(f"s_and_b32 s{sT2}, s{sT0}, 3")
A(f"s_mul_i32 s{sT2}, s{sT2}, 18")
A(f"s_add_u32 s{sT1}, s{sT1}, s{sT2}")
A(f"s_lshr_b32 s{sT2}, s{sT0}, 3")
A(f"s_mul_i32 s{sT2}, s{sT2}, 9")
A(f"s_add_u32 s{sT1}, s{sT1}, s{sT2}")
A(f"s_lshl_b32 s{sT1}, s{sT1}, 10")
A(f"s_bfe_u32 s{sT2}, s{sT0}, 0x10002")
A(f"s_lshl_b32 s{sT2}, s{sT2}, 9")
A(f"s_add_u32 s{sT1}, s{sT1}, s{sT2}")
A(f"s_add_u32 s{sT1}, s{sT1}, {WS_WP:#x}")
A(f"v_add_u32 v{FT+12}, s{sT1}, v{vL16}")
A("s_waitcnt vmcnt(0)")
for tap in range(9):
    for p in range(4):
        e0 = (2*p)*9 + tap
        e1 = (2*p+1)*9 + tap
        sel = sSelE if tap % 2 == 0 else sSelO
        A(f"v_perm_b32 v{WS_OUT+4*tap+p}, v{WS_IN+(e1>>1)}, v{WS_IN+(e0>>1)}, s{sel}")
for tap in range(9):
    if tap == 4 or tap == 8:
        A(f"v_add_u32 v{FT+12}, 4096, v{FT+12}")
    A(f"buffer_store_dwordx4 {vr(WS_OUT+4*tap,4)}, v{FT+12}, {srd(rWs)}, 0 offen offset:{(tap&3)*1024} sc1")
A("s_mov_b64 exec, -1")
A("s_branch L_shares_done")
label("L_no_wshare")
A(f"s_xor_b32 s{sT0}, s{sT0}, 2")
A(f"s_cmp_eq_u32 s{sT0}, s{sWave}")
A("s_cbranch_scc0 L_shares_done")
A(f"s_lshr_b32 s{sT0}, s{sJ}, 6")
A(f"s_lshl_b32 s{sT0}, s{sT0}, 2")
A(f"s_bfe_u32 s{sT1}, s{sJ}, 0x20002")
A(f"s_add_u32 s{sT0}, s{sT0}, s{sT1}")
A(f"s_cmp_ge_u32 s{sT0}, 6")
A("s_cbranch_scc1 L_shares_done")
A(f"s_and_b32 s{sT1}, s{sJ}, 3")
A(f"s_lshl_b32 s{sT2}, s{sWave}, 2")
A(f"s_add_u32 s{sT1}, s{sT1}, s{sT2}")
A(f"s_lshl_b32 s{sT2}, s{sT0}, 7")
A(f"v_add_u32 v{FT+12}, s{sT2}, v{vLane}")
A(f"s_mul_i32 s{sT3}, s{sB}, 1536")
A(f"v_lshlrev_b32 v{FT+13}, 1, v{FT+12}")
A(f"v_add_u32 v{FT+13}, s{sT3}, v{FT+13}")
A(f"s_lshl_b32 s{sT3}, s{sT1}, 4")
A(f"v_lshlrev_b32 v{FT+12}, 8, v{FT+12}")
A(f"v_add_u32 v{FT+12}, s{sT3}, v{FT+12}")
A(f"v_add_u32 v{FT+14}, {64*256}, v{FT+12}")
E = RING
A(f"global_load_ushort v{E}, v{FT+13}, {sp(pT)}")
A(f"global_load_ushort v{E+1}, v{FT+13}, {sp(pT)} offset:128")
A(f"global_load_dwordx4 {vr(E+4,4)}, v{FT+12}, {sp(pWe)}")
A(f"global_load_dwordx4 {vr(E+8,4)}, v{FT+14}, {sp(pWe)}")
A(f"s_mul_i32 s{sT2}, s{sB}, 6")
A(f"s_add_u32 s{sT2}, s{sT2}, s{sT0}")
A(f"s_lshl_b32 s{sT2}, s{sT2}, 9")
A(f"s_lshl_b32 s{sT3}, s{sT1}, 5")
A(f"s_add_u32 s{sT2}, s{sT2}, s{sT3}")
A(f"s_add_u32 s{sT2}, s{sT2}, {WS_EMBP:#x}")
A(f"v_mov_b32 v{FT+12}, s{sT2}")
A("s_waitcnt vmcnt(0)")
for i in range(2):
    A(f"v_lshlrev_b32 v{E+i}, 16, v{E+i}")
for i in range(2):
    A(f"v_mul_f32 v{E+2+i}, s{sNL2E}, v{E+i}")
for i in range(2):
    A(f"v_exp_f32 v{E+2+i}, v{E+2+i}")
A("s_nop 0")
for i in range(2):
    A(f"v_add_f32 v{E+2+i}, 1.0, v{E+2+i}")
for i in range(2):
    A(f"v_rcp_f32 v{E+2+i}, v{E+2+i}")
A("s_nop 0")
for i in range(2):
    A(f"v_mul_f32 v{E+i}, v{E+i}, v{E+2+i}")
A(f"v_cvt_pk_bf16_f32 v{E+2}, v{E}, v{E+1}")
A(f"v_lshlrev_b32 v{E}, 16, v{E+2}")
A(f"v_and_b32 v{E+1}, s{sHi}, v{E+2}")
P = E + 12
for c in range(8):
    for i in range(2):
        src = E + 4 + 4*i + (c >> 1)
        if c & 1:
            A(f"v_and_b32 v{E+20+i}, s{sHi}, v{src}")
        else:
            A(f"v_lshlrev_b32 v{E+20+i}, 16, v{src}")
    A(f"v_mul_f32 v{P+c}, v{E}, v{E+20}")
    A(f"v_fmac_f32 v{P+c}, v{E+1}, v{E+21}")
def dpp_reduce(regs):
    steps = ["row_shr:1 row_mask:0xf bank_mask:0xf bound_ctrl:0",
             "row_shr:2 row_mask:0xf bank_mask:0xf bound_ctrl:0",
             "row_shr:4 row_mask:0xf bank_mask:0xf bound_ctrl:0",
             "row_shr:8 row_mask:0xf bank_mask:0xf bound_ctrl:0",
             "row_bcast:15 row_mask:0xa bank_mask:0xf",
             "row_bcast:31 row_mask:0xc bank_mask:0xf"]
    A("s_nop 1")
    for st in steps:
        for r in regs:
            A(f"v_add_f32_dpp v{r}, v{r}, v{r} {st}")
        if len(regs) < 3:
            A(f"s_nop {2-len(regs)}")
dpp_reduce([P+c for c in range(8)])
A("s_mov_b32 exec_lo, 0")
A("s_mov_b32 exec_hi, 0x80000000")
A(f"buffer_store_dwordx4 {vr(P,4)}, v{FT+12}, {srd(rWs)}, 0 offen sc1")
A(f"buffer_store_dwordx4 {vr(P+4,4)}, v{FT+12}, {srd(rWs)}, 0 offen offset:16 sc1")
A("s_mov_b64 exec, -1")
label("L_shares_done")

A("s_waitcnt vmcnt(0) lgkmcnt(0)")
stamp()
SA = FT
for i in range(8):
    A(f"v_mov_b32 v{SA+i}, 0")
for k in range(32):
    A(f"v_dot2c_f32_bf16 v{SA+(k&3)}, s{sOnes}, v{XA+k}")
    A(f"v_dot2c_f32_bf16 v{SA+4+(k&3)}, v{XA+k}, v{XA+k}")
A(f"s_mul_i32 s{sTag}, s{sEpoch}, 0x9E3779B1")
A(f"s_add_u32 s{sTag}, s{sTag}, 0x7F4A7C15")
A("s_nop 1")
A(f"v_add_f32 v{SA}, v{SA}, v{SA+1}")
A(f"v_add_f32 v{SA+2}, v{SA+2}, v{SA+3}")
A(f"v_add_f32 v{SA+4}, v{SA+4}, v{SA+5}")
A(f"v_add_f32 v{SA+6}, v{SA+6}, v{SA+7}")
PUB = PAR
A(f"v_add_f32 v{PUB}, v{SA}, v{SA+2}")
A(f"v_add_f32 v{PUB+2}, v{SA+4}, v{SA+6}")
A(f"v_mov_b32 v{PUB+1}, s{sTag}")
A(f"v_mov_b32 v{PUB+3}, s{sTag}")
dpp_reduce([PUB, PUB+2])
A(f"s_lshl_b32 s{sT2}, s{sB}, 2")
A(f"s_add_u32 s{sT2}, s{sT2}, s{sWave}")
A(f"s_lshl_b32 s{sT2}, s{sT2}, 7")
A(f"s_add_u32 s{sT3}, s{sT2}, s{sJ}")
A(f"s_lshl_b32 s{sT3}, s{sT3}, 4")
A(f"s_add_u32 s{sT3}, s{sT3}, {WS_ST1:#x}")
A(f"v_mov_b32 v{vSt}, 0")
A("s_mov_b32 exec_lo, 0")
A("s_mov_b32 exec_hi, 0x80000000")
A(f"buffer_store_dwordx4 {vr(PUB,4)}, v{vSt}, {srd(rWs)}, s{sT3} offen sc1")
A("s_mov_b64 exec, -1")
stamp()
for i in range(4):
    for p in range(4):
        A(f"v_perm_b32 v{TR+4*i+p}, v{XB+2*(2*p+1)+(i>>1)}, v{XB+2*(2*p)+(i>>1)}, s{sSelHi if i&1 else sSelLo}")
for i in range(4):
    A(f"ds_write_b128 v{vLdsB}, {vr(TR+4*i,4)} offset:{16*i}")
T2 = TR + 16
for i in range(8):
    for p in range(4):
        A(f"v_perm_b32 v{T2+4*i+p}, v{XA+4*(2*p+1)+(i>>1)}, v{XA+4*(2*p)+(i>>1)}, s{sSelHi if i&1 else sSelLo}")
for i in range(8):
    A(f"ds_write_b128 v{vLdsA}, {vr(T2+4*i,4)} offset:{16*i}")
T3 = T2 + 32
for p in range(4):
    A(f"v_lshl_or_b32 v{T3+p}, v{XC+2*p+1}, 16, v{XC+2*p}")
A(f"ds_write_b128 v{vLdsC}, {vr(T3,4)}")
for r in (vG1, vB1, vG2, vB2):
    A(f"v_lshlrev_b32 v{r}, 16, v{r}")

A(f"s_lshl_b32 s{sT2}, s{sT2}, 4")
A(f"s_add_u32 s{sT2}, s{sT2}, {WS_ST1:#x}")
A(f"s_mov_b32 s{sSpin}, 0")
PL = FT
label("L_poll1")
A(f"buffer_load_dwordx4 {vr(PL,4)}, v{vL16}, {srd(rWs)}, s{sT2} offen sc1")
A(f"buffer_load_dwordx4 {vr(PL+4,4)}, v{vL16}, {srd(rWs)}, s{sT2} offen offset:1024 sc1")
A(f"s_add_u32 s{sSpin}, s{sSpin}, 1")
A(f"s_cmp_ge_u32 s{sSpin}, {SPIN_MAX}")
A("s_cbranch_scc1 L_poll1_done")
A("s_waitcnt vmcnt(0)")
A(f"v_xor_b32 v{PL+1}, s{sTag}, v{PL+1}")
A(f"v_xor_b32 v{PL+3}, s{sTag}, v{PL+3}")
A(f"v_xor_b32 v{PL+5}, s{sTag}, v{PL+5}")
A(f"v_xor_b32 v{PL+7}, s{sTag}, v{PL+7}")
A(f"v_or3_b32 v{PL+1}, v{PL+1}, v{PL+3}, v{PL+5}")
A(f"v_or_b32 v{PL+1}, v{PL+1}, v{PL+7}")
A(f"v_cmp_ne_u32 vcc, 0, v{PL+1}")
A("s_cbranch_vccnz L_poll1")
label("L_poll1_done")
A("s_waitcnt vmcnt(0)")
stamp()

class Q:
    def __init__(self, name, maxn):
        self.name, self.maxn, self.q = name, maxn, []
    def issue(self, tag):
        self.q.append(tag)
    def need(self, tag):
        if tag in self.q:
            i = self.q.index(tag)
            n = len(self.q) - 1 - i
            n = min(n, self.maxn)
            A(f"s_waitcnt {self.name}({n})")
            self.q = self.q[len(self.q) - n:] if n else []
    def drain(self):
        if self.q:
            A(f"s_waitcnt {self.name}(0)")
            self.q = []
VM = Q("vmcnt", 63)
LG = Q("lgkmcnt", 15)

def wload(gk):
    if gk >= 144:
        return
    if gk % 4 == 0 and gk > 0:
        A(f"s_add_u32 s{sW}, s{sW}, 4096")
    r = RING + 4 * (gk % NRING)
    A(f"buffer_load_dwordx4 {vr(r,4)}, v{vL16}, {srd(rWs)}, s{sW} offen offset:{(gk&3)*1024} sc1")
    VM.issue(("w", gk))

def params(vsum, vsq, vG, vBt):
    dpp_reduce([vsum, vsq])
    A(f"v_readlane_b32 s{sMean}, v{vsum}, 63")
    A(f"v_readlane_b32 s{sVar}, v{vsq}, 63")
    A(f"v_mov_b32 v{vTmp}, 0x36000000")
    A("s_nop 0")
    A(f"v_mul_f32 v{vsum}, s{sMean}, v{vTmp}")
    A(f"v_mul_f32 v{vsq}, s{sVar}, v{vTmp}")
    A(f"v_fma_f32 v{vsq}, -v{vsum}, v{vsum}, v{vsq}")
    A(f"v_max_f32 v{vsq}, 0, v{vsq}")
    A(f"v_add_f32 v{vsq}, 0x3727c5ac, v{vsq}")
    A(f"v_rsq_f32 v{vsq}, v{vsq}")
    A("s_nop 0")
    A(f"v_mul_f32 v{vsq}, v{vsq}, v{vG}")
    A(f"v_fma_f32 v{vsum}, -v{vsum}, v{vsq}, v{vBt}")
    A(f"v_mul_f32 v{vsq}, s{sNL2E}, v{vsq}")
    A(f"v_mul_f32 v{vsum}, s{sNL2E}, v{vsum}")
    A(f"ds_write2_b32 v{vPt}, v{vsq}, v{vsum} offset0:0 offset1:8")
    LG.issue("pw")

def act_ops(q, plane):
    ops = []
    def op(cost, s, pre=None, post=None):
        def f():
            if pre: pre()
            A(s)
            if post: post()
        ops.append((cost, f))
    for i in range(4):
        op(3, f"ds_read_b128 {vr(PAR+4*i,4)}, v{vPr} offset:{q*64+16*i}", post=(lambda i=i: LG.issue(("par", q, i))))
    def rd(r):
        op(3, f"ds_read_b128 {vr(RAW+4*(r&1),4)}, v{vAct+r} offset:{plane*PLANE}", post=(lambda: LG.issue(("raw", q, r))))
    rd(0); rd(1)
    for r in range(3):
        rw = RAW + 4 * (r & 1)
        T, U = FT, FT + 8
        for e in range(8):
            pre = (lambda r=r: LG.need(("raw", q, r))) if e == 0 else None
            if e & 1:
                op(1, f"v_and_b32 v{T+e}, s{sHi}, v{rw+(e>>1)}", pre=pre)
            else:
                op(1, f"v_lshlrev_b32 v{T+e}, 16, v{rw+(e>>1)}", pre=pre)
        for e in range(8):
            pre = (lambda: LG.need(("par", q, 3))) if (e == 0 and r == 0) else None
            op(1, f"v_fma_f32 v{T+e}, v{T+e}, v{PAR+e}, v{PAR+8+e}", pre=pre)
        for e in range(8):
            op(2, f"v_exp_f32 v{U+e}, v{T+e}")
        for e in range(8):
            op(1, f"v_fma_f32 v{U+e}, v{U+e}, s{sNL2E}, s{sNL2E}")
        for e in range(8):
            op(2, f"v_rcp_f32 v{U+e}, v{U+e}")
        for e in range(8):
            op(1, f"v_mul_f32 v{T+e}, v{T+e}, v{U+e}")
        for p in range(4):
            op(1, f"v_cvt_pk_bf16_f32 v{rw+p}, v{T+2*p}, v{T+2*p+1}")
        op(3, f"ds_write_b128 v{vAct+r}, {vr(rw,4)} offset:{plane*PLANE}", post=(lambda r=r: LG.issue(("aw", q, r))))
        if r == 0:
            rd(2)
    return ops

def run_ops(ops):
    for c, f in ops:
        f()

def plane_of(conv, q):
    return q if (conv == 0 or q < 2) else q + 2

def frag_off(conv, ks, t):
    q, pr, tap = ks // 18, (ks % 18) // 9, ks % 9
    ky, kx = tap // 3, tap % 3
    return (2 * pr * 6 + plane_of(conv, q)) * PLANE + ((t + ky) * PITCH + kx) * 16

EP = PAR
def epi1_ops(t):
    ops = []
    def op(cost, s, pre=None, post=None):
        def f():
            if pre: pre()
            A(s)
            if post: post()
        ops.append((cost, f))
    a = ACC + 16 * t
    EM = EP
    PK = EP + 16 + 8 * (t & 1)
    for i in range(16):
        pre = (lambda: LG.need(("emb", 3))) if i == 0 else None
        op(1, f"v_add_f32 v{a+i}, v{a+i}, v{EM+i}", pre=pre)
    for i in range(8):
        op(1, f"v_cvt_pk_bf16_f32 v{PK+i}, v{a+2*i}, v{a+2*i+1}")
    for i in range(8):
        op(1, f"v_min_u32 v{PK+i}, -2, v{PK+i}")
    op(1, "s_nop 0")
    for p in range(2):
        for d in range(2):
            op(1, f"v_permlane32_swap_b32 v{PK+4*p+d}, v{PK+4*p+2+d}")
    def stores():
        A(f"s_mov_b32 exec_lo, {halo_mask(t):#x}")
        A(f"s_mov_b32 exec_hi, {halo_mask(t):#x}")
        for p in range(2):
            A(f"buffer_store_dwordx4 {vr(PK+4*p,4)}, v{vHst}, {srd(rWs)}, s{sHal+2*p+(t>>1)} offen offset:{(t&1)*2048} sc1")
            VM.issue(("hs", t, p))
        A("s_mov_b64 exec, -1")
    ops.append((5, stores))
    for i in range(8):
        op(1, f"v_dot2c_f32_bf16 v{vS0}, s{sOnes}, v{PK+i}")
        op(1, f"v_dot2c_f32_bf16 v{vS1}, v{PK+i}, v{PK+i}")
    for p in range(2):
        op(3, f"ds_write_b128 v{vHw}, {vr(PK+4*p,4)} offset:{4*p*PLANE + t*PITCH*16}", post=(lambda p=p: LG.issue(("hw", t, p))))
    return ops

def epi2_ops(t):
    ops = []
    def op(cost, s, pre=None, post=None):
        def f():
            if pre: pre()
            A(s)
            if post: post()
        ops.append((cost, f))
    a = ACC + 16 * t
    PK = EP + 8 * t
    order = [0, 1, 3, 2]
    for k in range(4):
        qd = order[k]
        for d in range(2):
            op(1, f"v_cvt_pk_bf16_f32 v{PK+2*k+d}, v{a+4*qd+2*d}, v{a+4*qd+2*d+1}")
    op(1, "s_nop 0")
    for p in range(2):
        for d in range(2):
            op(1, f"v_permlane32_swap_b32 v{PK+4*p+d}, v{PK+4*p+2+d}")
    for p in range(2):
        op(2, f"buffer_store_dwordx4 {vr(PK+4*p,4)}, v{vOutO}, {srd(rOut)}, 0 offen offset:{(t+4*p)*256}", post=(lambda p=p: VM.issue(("os", t, p))))
    return ops

def conv(cv):
    seq = []
    for ks in range(54):
        for t in range(4):
            seq.append((ks, t))
    for t in range(4):
        for ks in range(54, 72):
            seq.append((ks, t))
    N = len(seq)
    last_use = {}
    for i, (ks, t) in enumerate(seq):
        last_use[ks] = i
    D = args.dist
    BAR_BACK = D + 2
    rd_next = [0]
    allowed = [72]
    def bread():
        i = rd_next[0]
        if i >= N or i >= allowed[0]:
            return False
        ks, t = seq[i]
        A(f"ds_read_b128 {vr(BF+4*(i%NB),4)}, v{vFrag} offset:{frag_off(cv, ks, t)}")
        LG.issue(("b", cv, i))
        rd_next[0] += 1
        return True
    for _ in range(D):
        bread()
    fill = []
    fill_deadline = [0]
    started = set()
    for i, (ks, t) in enumerate(seq):
        stage = i // 72
        pos = i % 72
        if pos == 0 and stage < 3:
            fill = act_ops(stage + 1, plane_of(cv, stage + 1))
            fill_deadline[0] = i + 72 - BAR_BACK - 1
        if stage == 3 and pos == 0 and cv == 0:
            def embrd():
                pass
            fill = []
            for k in range(4):
                def f(k=k):
                    A(f"ds_read_b128 {vr(EP+4*k,4)}, v{vEmb} offset:{32*k}")
                    LG.issue(("emb", k))
                fill.append((3, f))
            fill_deadline[0] = i + 10
        if stage == 3 and pos % 18 == 3 and pos >= 18:
            assert not fill
            tt = pos // 18 - 1
            fill = epi1_ops(tt) if cv == 0 else epi2_ops(tt)
            fill_deadline[0] = i + 14
        VM.need(("w", cv * 72 + ks))
        LG.need(("b", cv, i))
        a = ACC + 16 * t
        w = RING + 4 * ((cv * 72 + ks) % NRING)
        b = BF + 4 * (i % NB)
        cin = vr(a, 16)
        if cv == 0 and t not in started:
            cin = "0"
            started.add(t)
        if cv == 0:
            A(f"v_mfma_f32_32x32x16_bf16 {vr(a,16)}, {vr(w,4)}, {vr(b,4)}, {cin}")
        else:
            A(f"v_mfma_f32_32x32x16_bf16 {vr(a,16)}, {vr(b,4)}, {vr(w,4)}, {cin}")
        if stage < 3 and pos == 72 - BAR_BACK:
            assert not fill
            LG.need(("aw", stage + 1, 2))
            A("s_barrier")
            allowed[0] += 72
        while rd_next[0] < i + 1 + D and bread():
            pass
        budget = 5
        if last_use[ks] == i:
            wload(cv * 72 + ks + NRING)
            budget -= 1
        if fill:
            remaining_gaps = max(1, fill_deadline[0] - i + 1)
            total = sum(c for c, _ in fill)
            want = -(-total // remaining_gaps)
            want = max(want, 1)
            used = 0
            while fill and (used + fill[0][0] <= max(want, 0) or used == 0 or (remaining_gaps == 1)):
                c, f = fill.pop(0)
                f()
                used += c
            if used > budget + 1:
                sys.stderr.write(f"warn: conv{cv} gap {i} used {used} > budget {budget}\n")
    assert not fill
    A("s_nop 7")
    A("s_nop 3")
    run_ops(epi1_ops(3) if cv == 0 else epi2_ops(3))

A(f"s_lshl_b32 s{sT0}, s{sB}, 2")
A(f"s_add_u32 s{sT0}, s{sT0}, s{sWave}")
A(f"s_mul_i32 s{sW}, s{sT0}, {144*1024}")
A(f"s_add_u32 s{sW}, s{sW}, {WS_WP:#x}")
EL = BF
A(f"s_mul_i32 s{sT0}, s{sB}, {6*512}")
A(f"s_lshl_b32 s{sT1}, s{sWave}, 7")
A(f"s_add_u32 s{sT0}, s{sT0}, s{sT1}")
A(f"s_add_u32 s{sT0}, s{sT0}, {WS_EMBP:#x}")
A(f"v_and_b32 v{vTmp+1}, 31, v{vLane}")
A(f"v_lshlrev_b32 v{vTmp+1}, 2, v{vTmp+1}")
for s in range(6):
    A(f"buffer_load_dword v{ACC+s}, v{vTmp+1}, {srd(rWs)}, s{sT0} offen offset:{512*s} sc1")
    VM.issue(("e", s))
for gk in range(NRING):
    wload(gk)
A(f"v_add_f32 v{PL}, v{PL}, v{PL+4}")
A(f"v_add_f32 v{PL+2}, v{PL+2}, v{PL+6}")
A(f"v_mov_b32 v{vS0}, v{PL}")
A(f"v_mov_b32 v{vS1}, v{PL+2}")
params(vS0, vS1, vG1, vB1)
run_ops(act_ops(0, 0))
VM.need(("e", 5))
A(f"v_add_f32 v{ACC}, v{ACC}, v{ACC+1}")
A(f"v_add_f32 v{ACC+2}, v{ACC+2}, v{ACC+3}")
A(f"v_add_f32 v{ACC+4}, v{ACC+4}, v{ACC+5}")
A(f"v_add_f32 v{ACC}, v{ACC}, v{ACC+2}")
A(f"v_add_f32 v{ACC}, v{ACC}, v{ACC+4}")
A(f"s_add_u32 s{sT1}, s{sT1}, {EMBL}")
A(f"v_add_u32 v{vTmp+1}, s{sT1}, v{vTmp+1}")
A(f"ds_write_b32 v{vTmp+1}, v{ACC}")
LG.issue("ew")
A(f"v_lshrrev_b32 v{vEmb}, 5, v{vLane}")
A(f"v_lshlrev_b32 v{vEmb}, 4, v{vEmb}")
A(f"v_add_u32 v{vEmb}, s{sT1}, v{vEmb}")
A(f"v_mov_b32 v{vS0}, 0")
A(f"v_mov_b32 v{vS1}, 0")
LG.drain()
A("s_barrier")
stamp()
conv(0)
stamp()
A("s_nop 2")
dpp_reduce([vS0, vS1])
A(f"v_min_u32 v{vS0}, -2, v{vS0}")
A(f"v_min_u32 v{vS1}, -2, v{vS1}")
A(f"s_lshl_b32 s{sT2}, s{sB}, 2")
A(f"s_add_u32 s{sT2}, s{sT2}, s{sWave}")
A(f"s_lshl_b32 s{sT2}, s{sT2}, 7")
A(f"s_add_u32 s{sT3}, s{sT2}, s{sJ}")
A(f"s_lshl_b32 s{sT3}, s{sT3}, 3")
A(f"s_add_u32 s{sT3}, s{sT3}, {WS_ST2:#x}")
A("s_mov_b32 exec_lo, 0")
A("s_mov_b32 exec_hi, 0x80000000")
A(f"buffer_store_dwordx2 {vr(vS0,2)}, v{vSt}, {srd(rWs)}, s{sT3} offen sc1")
A("s_mov_b64 exec, -1")
VM.issue("st2")
assert NB >= 8
for t in range(4):
    for p in range(2):
        A(f"buffer_load_dwordx4 {vr(BF+8*t+4*p,4)}, v{vOutO}, {srd(rX)}, 0 offen offset:{(t+4*p)*256}")
        VM.issue(("xr", t, p))
A(f"s_lshl_b32 s{sT2}, s{sT2}, 3")
A(f"s_add_u32 s{sT2}, s{sT2}, {WS_ST2:#x}")
VM.drain()
for t in range(4):
    for p in range(2):
        r = BF + 8*t + 4*p
        A(f"v_permlane32_swap_b32 v{r}, v{r+2}")
        A(f"v_permlane32_swap_b32 v{r+1}, v{r+3}")
for t in range(4):
    order = [0, 1, 3, 2]
    for k in range(4):
        for d in range(2):
            src = BF + 8*t + 2*k + d
            dst = ACC + 16*t + 4*order[k] + 2*d
            A(f"v_lshlrev_b32 v{dst}, 16, v{src}")
            A(f"v_and_b32 v{dst+1}, s{sHi}, v{src}")
stamp()
HL = BF
P2 = BF + 16
A(f"s_mov_b32 s{sSpin}, 0")
label("L_poll2")
A(f"buffer_load_dwordx4 {vr(P2,4)}, v{vL16}, {srd(rWs)}, s{sT2} offen sc1")
for i in range(4):
    A(f"buffer_load_dwordx4 {vr(HL+4*i,4)}, v{vHld}, {srd(rWs)}, s{sHq+i} offen sc1")
A(f"s_add_u32 s{sSpin}, s{sSpin}, 1")
A(f"s_cmp_ge_u32 s{sSpin}, {SPIN_MAX}")
A("s_cbranch_scc1 L_poll2_done")
A("s_waitcnt vmcnt(0)")
M = BF + 20
A(f"v_max3_u32 v{M}, v{P2}, v{P2+1}, v{P2+2}")
A(f"v_max3_u32 v{M+1}, v{P2+3}, v{HL}, v{HL+1}")
for k in range(7):
    A(f"v_max3_u32 v{M+(k&1)}, v{M+(k&1)}, v{HL+2+2*k}, v{HL+3+2*k}")
A(f"v_max_u32 v{M}, v{M}, v{M+1}")
A(f"v_cmp_eq_u32 vcc, -1, v{M}")
A("s_cbranch_vccnz L_poll2")
label("L_poll2_done")
A("s_waitcnt vmcnt(0)")
stamp()
for i in range(4):
    A(f"ds_write_b128 v{vHlds}, {vr(HL+4*i,4)} offset:{plane_of(1,i)*PLANE}")
    LG.issue(("hl", i))
A(f"v_add_f32 v{vS0}, v{P2}, v{P2+2}")
A(f"v_add_f32 v{vS1}, v{P2+1}, v{P2+3}")
params(vS0, vS1, vG2, vB2)
run_ops(act_ops(0, 0))
LG.drain()
A("s_barrier")
stamp()
conv(1)
A(f"s_or_b32 s{sT0}, s{sJ}, s{sWave}")
A(f"s_cmp_eq_u32 s{sT0}, 0")
A("s_cbranch_scc0 L_noepoch")
A(f"s_add_u32 s{sT0}, s{sEpoch}, 1")
A(f"v_mov_b32 v{vTmp}, s{sT0}")
A(f"s_lshl_b32 s{sT1}, s{sB}, 8")
A("s_mov_b64 exec, 1")
A(f"buffer_store_dword v{vTmp}, v{vSt}, {srd(rWs)}, s{sT1} offen sc1")
A("s_mov_b64 exec, -1")
label("L_noepoch")
if DIAG:
    A("s_waitcnt vmcnt(0)")
    stamp()
    A("s_waitcnt lgkmcnt(0)")
    A(f"s_lshl_b32 s{sT0}, s2, 2")
    A(f"s_add_u32 s{sT0}, s{sT0}, s{sWave}")
    A(f"s_lshl_b32 s{sT0}, s{sT0}, 6")
    A(f"s_add_u32 s{sT0}, s{sT0}, {WS_DBG:#x}")
    A("s_mov_b64 exec, 1")
    for k in range(tsn[0]):
        A(f"v_mov_b32 v{vTmp}, s{sTs+2*k}")
        A(f"buffer_store_dword v{vTmp}, v{vSt}, {srd(rWs)}, s{sT0} offen offset:{4*k}")
    A(f"s_getreg_b32 s{sT1}, hwreg(HW_REG_XCC_ID)")
    A(f"v_mov_b32 v{vTmp}, s{sT1}")
    A(f"buffer_store_dword v{vTmp}, v{vSt}, {srd(rWs)}, s{sT0} offen offset:60")
label("L_end")
A("s_endpgm")
label("L_code_end")
L.append('.section .rodata,"a"')
L.append(".p2align 6")
L.append(f".amdhsa_kernel {KN}")
L.append(f"  .amdhsa_next_free_vgpr {VEND}")
L.append("  .amdhsa_next_free_sgpr 102")
L.append(f"  .amdhsa_accum_offset {(VEND+3)//4*4}")
L.append("  .amdhsa_group_segment_fixed_size 0")
L.append("  .amdhsa_kernarg_size 96")
L.append("  .amdhsa_user_sgpr_count 2")
L.append("  .amdhsa_user_sgpr_kernarg_segment_ptr 1")
L.append("  .amdhsa_system_sgpr_workgroup_id_x 1")
L.append("  .amdhsa_float_denorm_mode_32 3")
L.append(".end_amdhsa_kernel")
import subprocess, tempfile, os
txt = "\n".join(L) + "\n"
with tempfile.TemporaryDirectory() as td:
    open(td + "/a.s", "w").write(txt.replace("CODE_PF_MAX", "0x12345"))
    subprocess.check_call(["clang", "-x", "assembler", "-target", "amdgcn-amd-amdhsa", "-mcpu=gfx950", "-c", td + "/a.s", "-o", td + "/a.o"])
    nm = subprocess.check_output(["llvm-nm", td + "/a.o"], text=True)
    sym = {l.split()[2]: int(l.split()[0], 16) for l in nm.splitlines() if len(l.split()) == 3}
pfmax = sym["L_code_end"] - sym["L_pf_base"]
assert pfmax <= 32768 + 128, pfmax
txt = txt.replace("CODE_PF_MAX", hex(pfmax))
open(args.o, "w").write(txt)
sys.stderr.write(f"code bytes {sym['L_code_end']}\n")
sys.stderr.write(f"VEND={VEND} LDS={LDS_BYTES} lines={len(L)} stamps={tsn[0]}\n")
```
